```python
import torch

def _softmax(x, axis=-1):
    return torch.softmax(x, dim=axis)
def _gelu(x):
    return torch.nn.functional.gelu(x, approximate="tanh")
def _silu(x):
    return torch.nn.functional.silu(x)
def _sigmoid(x):
    return torch.sigmoid(x)
def _layernorm(x, axis=-1, eps=1e-5):
    m = x.mean(dim=axis, keepdim=True)
    v = x.var(dim=axis, keepdim=True, unbiased=False)
    return (x - m) / torch.sqrt(v + eps)
def _scatter_add(tgt, idx, src, axis=0):
    return tgt.clone().index_add_(axis, idx, src)
def _segment_sum(src, seg, n):
    out = torch.zeros((n,) + src.shape[1:], dtype=src.dtype)
    return out.index_add_(0, seg, src)
def _pad(x, pw):
    flat = tuple(v for pair in reversed(pw) for v in pair)
    return torch.nn.functional.pad(x, flat)

kernel_name = 'standalone__window_attn_swin_v2__vision'

def setup_inputs():

    _w = (lambda a: (lambda t: t.to(torch.bfloat16) if t.is_floating_point() else t)(torch.as_tensor(a)))
    win = 7
    H = W = (512 // win) * win
    C = 96
    nh = 4
    shift = win // 2
    coords = torch.stack(torch.meshgrid(torch.arange(win), torch.arange(win), indexing="ij"), -1).reshape(-1, 2)
    rel = coords[:, None, :] - coords[None, :, :]
    rel_idx = ((rel[..., 0] + win - 1) * (2 * win - 1) + (rel[..., 1] + win - 1)).to(torch.int64)
    tab = torch.stack(torch.meshgrid(torch.arange(1 - win, win), torch.arange(1 - win, win), indexing="ij"), -1).reshape(-1, 2).to(float)
    tab = (lambda _x: torch.sign(torch.as_tensor(_x)))(tab) * (lambda _x: torch.log1p(torch.as_tensor(_x)))(torch.abs(tab))
    img = torch.zeros((H, W), dtype=torch.int64)
    cnt = 0
    for hs in (slice(0, H - win), slice(H - win, H - shift), slice(H - shift, H)):
        for ws in (slice(0, W - win), slice(W - win, W - shift), slice(W - shift, W)):
            img[hs, ws] = cnt; cnt += 1
    mw = img.reshape(H // win, win, W // win, win).permute(0, 2, 1, 3).reshape(-1, win * win)
    mask = (mw[:, :, None] != mw[:, None, :]).to(float) * (-100.0)
    return {
        "x": _w((lambda *s: torch.randn(*s, dtype=torch.bfloat16) * 0.05)(1, H, W, C)),
        "wqkv": _w((lambda *s: torch.randn(*s, dtype=torch.bfloat16) * 1.6)(C, 3 * C)),
        "wo": _w((lambda *s: torch.randn(*s, dtype=torch.bfloat16) * 0.05)(C, C)),
        "logit_scale": _w((lambda *s: torch.randn(*s, dtype=torch.bfloat16) * 1.6)(nh)),
        "cpb_w1": _w((lambda *s: torch.randn(*s, dtype=torch.bfloat16) * 0.8)(2, 4 * nh)),
        "cpb_w2": _w((lambda *s: torch.randn(*s, dtype=torch.bfloat16) * 0.8)(4 * nh, nh)),
        "rel_coords": _w(tab),
        "rel_idx": _w(rel_idx),
        "attn_mask": _w(mask),
    }

def reference(x, wqkv, wo, logit_scale, cpb_w1, cpb_w2, rel_coords, rel_idx, attn_mask):
    B, H, W, C = x.shape
    win = 7
    nh = 4
    hd = C // nh
    shift = win // 2
    ww = win * win
    nH, nW = H // win, W // win
    xs = torch.roll(x, (-shift, -shift), (1, 2))
    xw = (lambda x, *d: x.permute(*d))(xs.reshape(B, nH, win, nW, win, C), 0, 1, 3, 2, 4, 5).reshape(B * nH * nW, ww, C)
    qkv = (lambda x, *d: x.permute(*d))((xw @ wqkv).reshape(B * nH * nW, ww, 3, nh, hd), 2, 0, 3, 1, 4)
    q, k, v = qkv[0], qkv[1], qkv[2]
    qn = q * (torch.einsum("bhqd,bhqd->bhq", q, q)[..., None] + 1e-12) ** -0.5
    kn = k * (torch.einsum("bhkd,bhkd->bhk", k, k)[..., None] + 1e-12) ** -0.5
    logits = torch.einsum("bhqd,bhkd->bhqk", qn, kn)
    tau = torch.exp(torch.clip(logit_scale, -100.0, 4.6052))
    logits = logits * tau[None, :, None, None]
    hcpb = rel_coords @ cpb_w1
    hcpb = torch.where(hcpb > 0, hcpb, hcpb * 0)
    bias_tab = 16.0 * _sigmoid(hcpb @ cpb_w2)
    bias = (lambda x, *d: x.permute(*d))(bias_tab[rel_idx], 2, 0, 1)
    logits = logits.reshape(B, nH * nW, nh, ww, ww) + bias[None, None, :, :, :] + attn_mask[None, :, None, :, :]
    p = _softmax(logits.reshape(B * nH * nW, nh, ww, ww), axis=-1)
    o = (lambda x, *d: x.permute(*d))(torch.einsum("bhqk,bhkd->bhqd", p, v), 0, 2, 1, 3).reshape(B * nH * nW, ww, C) @ wo
    o = (lambda x, *d: x.permute(*d))(o.reshape(B, nH, nW, win, win, C), 0, 1, 3, 2, 4, 5).reshape(B, H, W, C)
    o = torch.roll(o, (shift, shift), (1, 2))
    return _layernorm(o, axis=-1)
```

```python
import re

_RANGE = re.compile(r'^([vsa])\[(\d+):(\d+)\]$')
_SINGLE = re.compile(r'^([vsa])(\d+)$')

def regs_of(tok):
    tok = tok.strip()
    neg = tok.lstrip('-')
    if neg.startswith('abs(') and neg.endswith(')'):
        neg = neg[4:-1]
    m = _RANGE.match(neg)
    if m:
        return [f"{m.group(1)}{i}" for i in range(int(m.group(2)), int(m.group(3)) + 1)]
    m = _SINGLE.match(neg)
    if m:
        return [neg]
    if neg in ('vcc', 'exec', 'm0', 'scc'):
        return [neg]
    if neg in ('vcc_lo', 'vcc_hi'):
        return ['vcc']
    if neg in ('exec_lo', 'exec_hi'):
        return ['exec']
    return []

TRANS = ('v_exp_f32', 'v_log_f32', 'v_rcp_f32', 'v_rsq_f32', 'v_sqrt_f32', 'v_sin_f32', 'v_cos_f32')

class Inst:
    __slots__ = ('text', 'op', 'defs', 'uses', 'kind', 'bundle', 'mfma_c', 'mfma_ab', 'passes', 'prio', 'idx', 'dst_load', 'store_data', 'note')
    def __init__(self, text, extra_defs=(), extra_uses=()):
        self.text = text.strip()
        self.bundle = None
        self.note = None
        t = self.text.split(';')[0].strip()
        parts = t.split(None, 1)
        op = parts[0]
        self.op = op
        rest = parts[1] if len(parts) > 1 else ''
        ops = [o.strip() for o in rest.split(',')] if rest else []
        mods = []
        if ops:
            last = ops[-1].split()
            if last:
                ops[-1] = last[0]
                mods = last[1:]
        defs, uses = [], []
        self.mfma_c = []; self.mfma_ab = []; self.passes = 0
        self.dst_load = []; self.store_data = []
        R = lambda i: regs_of(ops[i]) if i < len(ops) else []
        allr = lambda a: sum((R(i) for i in range(a, len(ops))), [])
        if op.startswith('v_mfma'):
            self.kind = 'mfma'
            defs = R(0); uses = R(1) + R(2) + R(3)
            self.mfma_ab = R(1) + R(2); self.mfma_c = R(3)
            if '32x32x16' in op or '32x32x8' in op: self.passes = 8
            elif '16x16x4_f32' in op: self.passes = 8
            else: self.passes = 4
            uses += ['exec']
        elif op.startswith('v_cmp'):
            self.kind = 'valu'; defs = R(0); uses = allr(1) + ['exec']
        elif op in ('v_readfirstlane_b32', 'v_readlane_b32'):
            self.kind = 'valu'; defs = R(0); uses = allr(1) + ['exec']
        elif op.startswith('v_permlane') and 'swap' in op:
            self.kind = 'perm'; defs = R(0) + R(1); uses = R(0) + R(1) + ['exec']
        elif op.startswith('v_'):
            base = op.replace('_e32', '').replace('_e64', '').replace('_dpp', '').replace('_sdwa', '')
            self.kind = 'trans' if base in TRANS else 'valu'
            defs = R(0); uses = allr(1) + ['exec']
            if base in ('v_fmac_f32', 'v_fma_mixhi_f16', 'v_fma_mixlo_f16', 'v_dot2c_f32_bf16', 'v_writelane_b32') or '_dpp' in op or '_sdwa' in op or any(m.startswith('row_') or m.startswith('quad_perm') for m in mods):
                uses += R(0)
            if base in ('v_add_co_u32', 'v_sub_co_u32', 'v_addc_co_u32'):
                defs = R(0) + R(1); uses = allr(2) + ['exec']
            if any(m.startswith('row_') or m.startswith('quad_perm') for m in mods):
                self.kind = 'dpp'
        elif op.startswith('ds_read') :
            self.kind = 'dsr'; defs = R(0); uses = allr(1) + ['exec']; self.dst_load = list(defs)
        elif op.startswith('ds_bpermute') or op.startswith('ds_swizzle'):
            self.kind = 'dsr'; defs = R(0); uses = allr(1) + ['exec']; self.dst_load = list(defs)
        elif op.startswith('ds_write'):
            self.kind = 'dsw'; uses = allr(0) + ['exec']
        elif op.startswith('buffer_load') or op.startswith('global_load'):
            if 'lds' in mods:
                self.kind = 'dma'; uses = allr(0) + ['m0', 'exec']
            else:
                self.kind = 'vld'; defs = R(0); uses = allr(1) + ['exec']; self.dst_load = list(defs)
        elif op.startswith('buffer_store'):
            self.kind = 'vst'; uses = allr(0) + ['exec']; self.store_data = R(0)
        elif op.startswith('global_store'):
            self.kind = 'vst'; uses = allr(0) + ['exec']; self.store_data = R(1)
        elif op.startswith('s_load') or op in ('s_memtime', 's_memrealtime'):
            self.kind = 'smem'; defs = R(0); uses = allr(1)
        elif op in ('s_waitcnt', 's_nop', 's_barrier', 's_endpgm', 's_setprio', 's_sleep') or op.startswith('s_cbranch') or op == 's_branch':
            self.kind = 'ctl'
            if op.startswith('s_cbranch_scc'): uses = ['scc']
            if op.startswith('s_cbranch_vcc'): uses = ['vcc']
            if op.startswith('s_cbranch_exec'): uses = ['exec']
        elif op.startswith('s_cmp') or op.startswith('s_bitcmp'):
            self.kind = 'salu'; defs = ['scc']; uses = allr(0)
        elif op.startswith('s_'):
            self.kind = 'salu'
            defs = R(0); uses = allr(1)
            if op in ('s_mov_b32', 's_mov_b64', 's_movk_i32', 's_getpc_b64', 's_mul_i32', 's_mul_hi_u32', 's_cselect_b32', 's_cselect_b64', 's_brev_b32'):
                pass
            else:
                defs = defs + ['scc']
            if op in ('s_cselect_b32', 's_cselect_b64', 's_addc_u32', 's_subb_u32'):
                uses = uses + ['scc']
            if 'saveexec' in op:
                defs = defs + ['exec']; uses = uses + ['exec']
            if op in ('s_addk_i32', 's_mulk_i32'):
                uses = uses + R(0)
        elif op.endswith(':') or op.startswith('.'):
            self.kind = 'label'
        else:
            raise ValueError('unknown op ' + text)
        self.defs = set(defs) | set(extra_defs)
        self.uses = set(uses) | set(extra_uses)
    def __repr__(self):
        return self.text

def cost(i):
    k = i.kind
    if k == 'mfma': return 8
    if k in ('trans', 'perm'): return 8
    return 4
def latency(i, consumer):
    k = i.kind
    if k == 'mfma':
        if consumer.kind == 'mfma' and set(consumer.mfma_c) == i.defs and not (set(consumer.mfma_ab) & i.defs):
            return 4 * i.passes
        return 4 * i.passes + 24
    if k == 'dsr': return 140
    if k == 'vld': return 700
    if k == 'trans': return 12
    if k in ('valu', 'dpp', 'perm'):
        if consumer.kind == 'mfma': return 12
        if consumer.kind in ('perm', 'dpp'): return 12
        return 8
    return 4

class Bundle:
    def __init__(self, insts):
        self.insts = insts
        self.defs = set().union(*[i.defs for i in insts])
        self.uses = set().union(*[i.uses for i in insts])
        self.defs.discard('exec'); self.uses.discard('exec')
        self.kind = 'bundle'
        self.mfma_c = []; self.mfma_ab = []; self.passes = 0
        self.text = 'bundle'

def sched_cost(n):
    if n.kind == 'bundle': return sum(cost(i) for i in n.insts)
    return cost(n)
def sched_lat(p, c):
    if p.kind == 'bundle': return sched_cost(p) + 4
    if c.kind == 'bundle':
        class X: kind='valu'; mfma_c=[]; mfma_ab=[]
        return latency(p, X)
    return latency(p, c)

def schedule(nodes, mfma_gap=16, verbose=False):
    n = len(nodes)
    preds = [[] for _ in range(n)]
    succs = [[] for _ in range(n)]
    last_def = {}; last_uses = {}
    for j, nd in enumerate(nodes):
        dep = {}
        for r in nd.uses:
            if r in last_def:
                p = last_def[r]
                if r == 'exec' and nodes[p].kind == 'bundle': l = sched_cost(nodes[p])
                else: l = sched_lat(nodes[p], nd)
                dep[p] = max(dep.get(p, 0), l)
        for r in nd.defs:
            if r in last_def:
                p = last_def[r]
                l = 4
                if nodes[p].kind == 'mfma' and not (nd.kind == 'mfma'): l = 4 * nodes[p].passes + 24
                if nodes[p].kind in ('dsr', 'vld'): l = sched_lat(nodes[p], nd)
                dep[p] = max(dep.get(p, 0), l)
            for p in last_uses.get(r, []):
                if p != j:
                    l = 4
                    if nodes[p].kind == 'mfma' and r in nodes[p].mfma_c and nd.kind != 'mfma': l = 16
                    dep[p] = max(dep.get(p, 0), l)
        for r in nd.uses:
            last_uses.setdefault(r, []).append(j)
        for r in nd.defs:
            last_def[r] = j; last_uses[r] = []
        for p, l in dep.items():
            if p != j:
                preds[j].append((p, l)); succs[p].append((j, l))
    prio = [0] * n
    for j in range(n - 1, -1, -1):
        best = sched_cost(nodes[j])
        for s, l in succs[j]:
            best = max(best, l + prio[s])
        prio[j] = best
    npred = [len(p) for p in preds]
    ready_t = [0] * n
    avail = [j for j in range(n) if npred[j] == 0]
    t = 0; tm = 0
    order = []
    while avail:
        best = None; bk = None
        for j in avail:
            st = max(t, ready_t[j])
            if nodes[j].kind == 'mfma': st = max(st, tm)
            key = (st, -prio[j], j)
            if best is None or key < bk:
                best = j; bk = key
        j = best; st = bk[0]
        avail.remove(j)
        order.append(j)
        c = sched_cost(nodes[j])
        t = st + c
        if nodes[j].kind == 'mfma': tm = st + 4 * nodes[j].passes
        for s, l in succs[j]:
            ready_t[s] = max(ready_t[s], st + l)
            npred[s] -= 1
            if npred[s] == 0: avail.append(s)
    assert len(order) == n
    if verbose: print(f"; schedule: {n} nodes, est {t} cycles")
    return [nodes[j] for j in order], t

def flatten(nodes):
    out = []
    for nd in nodes:
        if nd.kind == 'bundle': out += nd.insts
        else: out.append(nd)
    return out

def insert_waits(insts, lg_pending=None, vm_pending=None):
    out = []
    lg = list(lg_pending or [])
    vm = list(vm_pending or [])
    for i in insts:
        if i.kind == 'label' or (i.kind == 'ctl' and (i.op.startswith('s_cbranch') or i.op == 's_branch')):
            need_l = any(d for d in lg if d); need_v = any(d for d in vm if d)
            if need_l or need_v:
                w = 's_waitcnt' + (' vmcnt(0)' if need_v else '') + (' lgkmcnt(0)' if need_l else '')
                out.append(Inst(w))
                if need_l: lg = []
                if need_v: vm = []
            out.append(i)
            continue
        if i.op == 's_waitcnt':
            m = re.search(r'lgkmcnt\((\d+)\)', i.text)
            if m:
                k = int(m.group(1)); lg = lg[len(lg) - k:] if k < len(lg) else lg
                if k == 0: lg = []
            m = re.search(r'vmcnt\((\d+)\)', i.text)
            if m:
                k = int(m.group(1)); vm = vm[len(vm) - k:] if k < len(vm) else vm
                if k == 0: vm = []
            out.append(i); continue
        touched = i.uses | i.defs
        nl = None
        for idx, d in enumerate(lg):
            if d and (d & touched):
                k = len(lg) - idx - 1
                if 'smem' in d: k = 0
                nl = k if nl is None else min(nl, k)
        if nl is not None and any('smem' in d for d in lg): nl = 0
        nv = None
        for idx, d in enumerate(vm):
            if d and (d & touched):
                k = len(vm) - idx - 1
                nv = k if nv is None else min(nv, k)
        if nl is not None or nv is not None:
            w = 's_waitcnt'
            if nv is not None:
                nv = min(nv, 63); w += f' vmcnt({nv})'; vm = vm[len(vm) - nv:] if nv else []
            if nl is not None:
                nl = min(nl, 15); w += f' lgkmcnt({nl})'; lg = lg[len(lg) - nl:] if nl else []
            out.append(Inst(w))
        out.append(i)
        if i.kind == 'dsr': lg.append(set(i.dst_load))
        elif i.kind == 'dsw': lg.append(set())
        elif i.kind == 'smem': lg.append(set(i.defs) | {'smem'})
        elif i.kind == 'vld': vm.append(set(i.dst_load))
        elif i.kind in ('vst', 'dma'): vm.append(set())
    return out

def insert_nops(insts):
    out = []
    hist = []
    pos = 0
    VALUK = ('valu', 'trans', 'perm', 'dpp')
    def need(i):
        req = 0
        for (p, pp) in hist:
            d = pos - pp - 1
            w = 0
            if p.kind in VALUK:
                vd = {r for r in p.defs if r[0] in 'va' and r != 'vcc'}
                sd = {r for r in p.defs if r[0] == 's' or r == 'vcc'}
                if i.kind == 'mfma' and vd & i.uses: w = max(w, 2)
                if i.kind == 'perm' and vd & i.uses: w = max(w, 2)
                if i.kind == 'dpp' and vd & i.uses: w = max(w, 2)
                if i.op in ('v_readfirstlane_b32', 'v_readlane_b32') and vd & i.uses: w = max(w, 1)
                if p.kind == 'trans' and i.kind in VALUK + ('mfma',) and vd & i.uses: w = max(w, 1 if i.kind != 'mfma' else 2)
                if sd and i.kind in VALUK and (sd & i.uses): w = max(w, 4 if i.op in ('v_readlane_b32', 'v_writelane_b32') else 2)
                if sd and i.kind in ('vld', 'vst', 'dma') and (sd & i.uses): w = max(w, 5)
                if sd and i.kind in ('salu', 'ctl') and (sd & i.uses): w = max(w, 3)
                if 'exec' in p.defs and i.kind == 'mfma': w = max(w, 4)
                if '_sdwa' in p.op and i.kind in VALUK and vd & (i.uses | i.defs): w = max(w, 1)
            if p.kind == 'mfma':
                D = p.defs
                P = p.passes
                tab = {4: (6, 8, 3), 8: (10, 12, 7)}[P]
                if i.kind == 'mfma':
                    if D & set(i.mfma_ab): w = max(w, tab[1])
                    if D & set(i.mfma_c):
                        if not (set(i.mfma_c) == D and i.passes == P): w = max(w, tab[0])
                    if (D & i.defs) and i.defs != D: w = max(w, tab[0])
                elif i.kind in VALUK or i.kind in ('dsr', 'dsw', 'vld', 'vst', 'dma'):
                    if D & (i.uses | i.defs): w = max(w, tab[1])
                if i.kind in VALUK and set(p.mfma_c) & i.defs: w = max(w, tab[2])
                if i.kind in ('dsr', 'vld') and set(p.mfma_c) & i.defs: w = max(w, tab[2])
            if p.kind == 'vst' and len(p.store_data) >= 3 and i.kind in VALUK + ('mfma', 'dsr', 'vld') and set(p.store_data) & i.defs: w = max(w, 2)
            if p.kind == 'salu' and 'm0' in p.defs and i.kind == 'dma': w = max(w, 1)
            if p.kind == 'salu' and 'exec' in p.defs and i.kind in ('dpp',): w = max(w, 5)
            if w > d: req = max(req, w - d)
        return req
    for i in insts:
        if i.kind == 'label' or (i.kind == 'ctl' and (i.op.startswith('s_cbranch') or i.op in ('s_branch', 's_endpgm'))):
            req = 0
            for (p, pp) in hist:
                d = pos - pp - 1
                w = 0
                if p.kind == 'mfma': w = {4: 8, 8: 12}[p.passes]
                elif p.kind in VALUK: w = 5 if any(r[0] == 's' or r == 'vcc' for r in p.defs) else 2
                elif p.kind == 'vst': w = 2
                elif p.kind == 'salu' and 'm0' in p.defs: w = 1
                req = max(req, w - d)
            if i.kind == 'ctl' and i.op.startswith('s_cbranch'):
                req = max(req, need(i))
            while req > 0:
                k = min(req, 16); out.append(Inst(f's_nop {k-1}')); pos += k; req -= k
            out.append(i); pos += 1
            hist = []
            continue
        req = need(i)
        if i.op == 's_nop':
            k = int(i.text.split()[1]) + 1
            out.append(i); pos += k
            continue
        while req > 0:
            k = min(req, 16); out.append(Inst(f's_nop {k-1}')); pos += k; req -= k
        out.append(i)
        hist.append((i, pos)); pos += 1
        hist = [(p, pp) for (p, pp) in hist if pos - pp <= 14]
    return out
```

```python
import numpy as np
lane = np.arange(64); c16 = lane & 15; g = lane >> 4
ONE = 0x3F80
def sel_matrix(estar):
    out = np.zeros((4, 64), dtype=np.uint32)
    for l in range(64):
        i = l & 15; gg = l >> 4
        e = estar[i]
        if e < 0: continue
        d = e - 8 * gg
        if 0 <= d < 8:
            out[d >> 1, l] = ONE << (16 * (d & 1))
    return out
gi = np.arange(16) >> 2; ri = np.arange(16) & 3
S0 = sel_matrix(6 * gi + ri)
S1 = sel_matrix(np.where(ri < 2, 6 * gi + 4 + ri, -1))
SK1 = sel_matrix(np.where(ri >= 2, 6 * gi + ri - 2, -1))
SK2 = sel_matrix(6 * gi + 2 + ri)
SO0 = sel_matrix(8 * gi + 0 + ri)
SO1 = sel_matrix(8 * gi + 4 + ri)
ASEL0 = np.where(c16 % 4 == 0, 0x00003F80, np.where(c16 % 4 == 1, 0x3F800000, 0)).astype(np.uint32)
ASEL1 = np.where(c16 % 4 == 2, 0x00003F80, np.where(c16 % 4 == 3, 0x3F800000, 0)).astype(np.uint32)
ONESC = np.where(c16 % 4 == 2, 0x3F800000, 0).astype(np.uint32)
MASKK = np.where(g == 0, 0xC6800000, 0).astype(np.uint32)
QEXTRA = np.where(g == 0, 0x3F800000, 0).astype(np.uint32)
MODD = np.where(g & 1, 0xFFFFFFFF, 0).astype(np.uint32)
MHI = np.where(g >= 2, 0xFFFFFFFF, 0).astype(np.uint32)
WROW = ((8 * (c16 >> 2) + (c16 & 3)) * 576 + 16 * g).astype(np.uint32)
def wo_rowoff(s, half):
    gD = c16 >> 2; rD = c16 & 3
    j = 4 * half + rD
    m = 4 * s + (j >> 1)
    hh = m // 3; p = m % 3
    c = 24 * hh + 6 * gD + 2 * p + (j & 1)
    return (c * 192 + 16 * g).astype(np.uint32)
def relidx(q, k):
    return (q // 7 - k // 7 + 6) * 13 + (q % 7 - k % 7 + 6)
def bias_pairs():
    out = []
    for kt in range(3):
        for qt in range(3):
            for r in range(4):
                out.append((16 * qt + c16, 16 * kt + 4 * g + r))
    for qt in range(3):
        out.append((16 * qt + c16, np.full(64, 48)))
    out.append((np.full(64, 48), np.where(g < 3, 16 * g + c16, 48)))
    return out
def cls(t, typ):
    rc = ((t // 7) >= 4) & (typ in (1, 3))
    cc = ((t % 7) >= 4) & (typ in (2, 3))
    return rc.astype(int) * 2 + cc.astype(int)
def tokoff(t, typ):
    r = t // 7; c = t % 7
    R = (507 + r) % 511 if typ in (1, 3) else r
    C = (507 + c) % 511 if typ in (2, 3) else c
    return R * 98112 + C * 192
def build():
    quads = []
    def q4(*regs):
        regs = list(regs) + [np.zeros(64, dtype=np.uint32)] * (4 - len(regs))
        quads.append(np.stack([np.asarray(r, dtype=np.uint64).astype(np.uint32) for r in regs], axis=1))
    names = {}
    for nm, S in (('S0', S0), ('S1', S1), ('SK1', SK1), ('SK2', SK2), ('SO0', SO0), ('SO1', SO1)):
        names[nm] = len(quads); q4(*S)
    names['C0'] = len(quads); q4(ASEL0, ASEL1, ONESC, MASKK)
    names['C1'] = len(quads); q4(QEXTRA, MODD, MHI, WROW)
    names['WOROW'] = len(quads)
    for s in range(3): q4(wo_rowoff(s, 0), wo_rowoff(s, 1))
    bp = bias_pairs()
    names['BIDX'] = len(quads)
    idx = [4 * relidx(q, k) for q, k in bp]
    for i in range(0, 40, 4): q4(*idx[i:i + 4])
    names['BMASK'] = len(quads)
    for typ in (1, 2, 3):
        lo = np.zeros(64, dtype=np.uint64); hi = np.zeros(64, dtype=np.uint64)
        for e, (q, k) in enumerate(bp):
            m = (cls(np.asarray(q), typ) != cls(np.asarray(k), typ)).astype(np.uint64)
            if e < 32: lo |= m << np.uint64(e)
            else: hi |= m << np.uint64(e - 32)
        q4(lo, hi)
    names['TOK'] = len(quads)
    for typ in range(4):
        q4(*[tokoff(16 * i + c16, typ) + 16 * g for i in range(3)], tokoff(np.full(64, 48), typ) + 16 * g)
    names['DMA'] = len(quads)
    for typ in range(4):
        for v in range(4):
            regs = []
            for j in (v, v + 4, 8):
                i, s = j // 3, j % 3
                regs.append(tokoff(16 * i + c16, typ) + 64 * s + 16 * g)
            q4(*regs)
    return np.stack(quads), names
if __name__ == '__main__':
    t, n = build(); print(t.shape, n)
```

```python
import sys, struct
import numpy as np
from asmlib import *
import tables

NAME = 'standalone__window_attn_swin_v2__vision'
SCHED = True
def f2u(x): return struct.unpack('<I', struct.pack('<f', x))[0]
LOG2E = 1.4426950408889634

XB = 0; XSZ = 9216
OB = 27648; OSZ = 9216
WOB = 46080
QLT = 64512
OLR = 68608
PLB = 74752
LDS_TOTAL = 75264
TB = OB

class VA:
    def __init__(self): self.n = 0
    def get(self, n, align=1):
        self.n = (self.n + align - 1) // align * align
        b = self.n; self.n += n; return b
va = VA()
Aa = va.get(24, 4); Ab = va.get(12, 4); Ac = va.get(12, 4); Ad = va.get(8, 4); Ae = va.get(8, 4)
WQK = va.get(36, 4); WV = va.get(24, 4); BIAS = va.get(36, 4)
BX = va.get(10, 2)
bL = [BX, BX + 2, BX + 4]; bLq = BX + 6
vL16 = BX + 1; vL4 = BX + 3; vXA = BX + 5; vOW = BX + 7; vOR = BX + 8; vSTs = BX + 9
ASEL = va.get(2, 2); ONESC = va.get(4, 2)
KOP = [va.get(4, 2) for _ in range(4)]
QOP = [va.get(4, 2) for _ in range(3)]
VOP = [[va.get(4, 2) for T in range(2)] for v in range(2)]
POP = [[va.get(4, 2) for T in range(2)] for s in range(2)]
PKSS = [va.get(2, 2) for _ in range(2)]
vDMA = [va.get(1) for _ in range(3)]
vST = [va.get(1) for _ in range(3)]
vMaskK = va.get(1); vG16 = va.get(1); vPLw = va.get(1); vPLr = va.get(1); vOLR = va.get(1)
mOdd = va.get(1); mHi = va.get(1); vLoff = va.get(1); vLane = va.get(1)
NVGPR = va.n
assert NVGPR <= 256, NVGPR

def q(b, n=4): return f'v[{b}:{b+n-1}]'
def wqk(u, s): return WQK + (u * 3 + s) * 4
def wv(v, s): return WV + (v * 3 + s) * 4
def bias(kt, qt): return BIAS + (kt * 3 + qt) * 4

sX = 4; sO = 8; sT = 12; sTab = 16
sH = 20; sType = 21; sStart = 22; sN = 23; sW = 24
sXR = 25; sXD = 26; sOWb = 27; sORb = 28; sBd = 29; sBo = 30; sTask = 31
sTau = 32; sSlow = 33; sEx = 34
sCx = 36; sC0 = 37; sInv96 = 38; sEpsLN = 39; sEps4 = 40; sRho = 41; sEq = 42
sK = 44
sOutP = 60
sT0 = 62; sT1 = 63; sT2 = 64; sT3 = 65; sT4 = 66; sT5 = 67
NSGPR = 72

class G:
    def __init__(self): self.cur = []; self.out = []
    def I(self, t, d=(), u=()):
        i = Inst(t, d, u); self.cur.append(i); return i
    def bundle(self, texts):
        self.cur.append(Bundle([Inst(t) for t in texts]))
    def flush(self, sched=False, name=''):
        nodes = self.cur; self.cur = []
        if sched and SCHED:
            nodes, t = schedule(nodes)
            self.out.append(Inst(f's_nop 0')) if False else None
            print(f'region {name}: {len(nodes)} nodes est {t} cycles', file=sys.stderr)
        self.out += flatten(nodes)
    def label(self, l):
        self.flush(); self.out.append(Inst(l + ':'))
g_ = G()
I = g_.I

def mfma(D, A, B, C, op='v_mfma_f32_16x16x32_bf16'):
    c = '0' if C is None else q(C)
    I(f'{op} {q(D)}, {q(A)}, {q(B)}, {c}')
def mfma16k(D, A, B):
    I(f'v_mfma_f32_16x16x16_bf16 {q(D)}, {q(A,2)}, {q(B,2)}, 0')
def cvtpk(d, a, b): I(f'v_cvt_pk_bf16_f32 v{d}, {a}, {b}')
def tabload(dst, quad_expr_sgpr=None, quad=None):
    if quad is not None:
        off = quad * 1024
        I(f's_mov_b32 s{sT5}, {off}')
        I(f'buffer_load_dwordx4 {q(dst)}, v{vL16}, s[{sTab}:{sTab+3}], s{sT5} offen')
    else:
        I(f'buffer_load_dwordx4 {q(dst)}, v{vL16}, s[{sTab}:{sTab+3}], s{quad_expr_sgpr} offen')

def window_base(dst, sw):
    I(f's_add_u32 s{sT0}, s{sStart}, s{sw}')
    I(f's_mov_b32 s{sT1}, 59652324')
    I(f's_mul_hi_u32 s{sT1}, s{sT0}, s{sT1}')
    I(f's_mul_i32 s{sT2}, s{sT1}, 72')
    I(f's_sub_u32 s{sT2}, s{sT0}, s{sT2}')
    I(f's_mul_i32 s{sT1}, s{sT1}, 686784')
    I(f's_mul_i32 s{sT2}, s{sT2}, s{sCx}')
    I(f's_add_u32 s{sT1}, s{sT1}, s{sT2}')
    I(f's_add_u32 s{sT1}, s{sT1}, s{sC0}')
    I(f's_cmp_lt_u32 s{sw}, s{sN}')
    I(f's_cselect_b32 s{dst}, s{sT1}, 0x7F000000')

def dma_issue(sbase, sbuf):
    I(f's_lshl_b32 s{sT3}, s{sH}, 10')
    I(f's_add_u32 s{sT3}, s{sT3}, s{sbuf}')
    I(f's_mov_b32 m0, s{sT3}')
    I(f'buffer_load_dwordx4 v{vDMA[0]}, s[{sX}:{sX+3}], s{sbase} offen lds', d=['mem:vm'], u=['mem:vm'])
    I(f's_add_u32 s{sT3}, s{sT3}, 4096')
    I(f's_mov_b32 m0, s{sT3}')
    I(f'buffer_load_dwordx4 v{vDMA[1]}, s[{sX}:{sX+3}], s{sbase} offen lds', d=['mem:vm'], u=['mem:vm'])
    I(f's_add_u32 s{sT3}, s{sbuf}, 8192')
    I(f's_mov_b32 m0, s{sT3}')
    b = Bundle([Inst(f's_mov_b64 exec, s[{sEq}:{sEq+1}]'),
                Inst(f'buffer_load_dwordx4 v{vDMA[2]}, s[{sX}:{sX+3}], s{sbase} offen lds', ['mem:vm'], ['mem:vm']),
                Inst(f's_mov_b64 exec, -1')])
    g_.cur.append(b)

def tstage_mfma(XF, Dqk, Dv, xf_loader=None):
    for s in range(3):
        X = XF + 4 * s
        for u in range(3):
            mfma(Dqk + 4 * u, wqk(u, s), X, None if s == 0 else Dqk + 4 * u)
        mfma(Dv, X, wv(0, s), None if s == 0 else Dv)
        mfma(Dv + 4, X, wv(1, s), ONESC if s == 0 else Dv + 4)
        if xf_loader: xf_loader(s)

def norm_stage(Dqk, tmp, pk, kop, qop):
    ssq, ssk, Dn = tmp, tmp + 1, tmp + 2
    I(f'v_fma_f32 v{ssq}, v{Dqk}, v{Dqk}, s{sEps4}')
    I(f'v_fma_f32 v{ssk}, v{Dqk+6}, v{Dqk+6}, s{sEps4}')
    for j in range(1, 6):
        I(f'v_fmac_f32 v{ssq}, v{Dqk+j}, v{Dqk+j}')
        I(f'v_fmac_f32 v{ssk}, v{Dqk+6+j}, v{Dqk+6+j}')
    cvtpk(pk, f'v{ssq}', f'v{ssk}')
    mfma16k(Dn, ASEL, pk)
    I(f'v_rsq_f32 v{Dn}, v{Dn}')
    I(f'v_rsq_f32 v{Dn+1}, v{Dn+1}')
    I(f'v_mul_f32 v{Dn}, s{sTau}, v{Dn}')
    for j in range(6):
        I(f'v_mul_f32 v{Dqk+j}, v{Dn}, v{Dqk+j}')
        I(f'v_mul_f32 v{Dqk+6+j}, v{Dn+1}, v{Dqk+6+j}')
    for j in range(3):
        cvtpk(qop + j, f'v{Dqk+2*j}', f'v{Dqk+2*j+1}')
        cvtpk(kop + j, f'v{Dqk+6+2*j}', f'v{Dqk+6+2*j+1}')

def vcvt_stage(Dv, tile):
    T = tile >> 1; o = 2 * (tile & 1)
    for v in range(2):
        cvtpk(VOP[v][T] + o, f'v{Dv+4*v}', f'v{Dv+4*v+1}')
        cvtpk(VOP[v][T] + o + 1, f'v{Dv+4*v+2}', f'v{Dv+4*v+3}')

def allreduce_g(op, x, t):
    I(f'v_mov_b32 v{t}, v{x}')
    I(f'v_permlane32_swap_b32 v{x}, v{t}')
    I(f'{op} v{x}, v{x}, v{t}')
    I(f'v_mov_b32 v{t}, v{x}')
    I(f'v_permlane16_swap_b32 v{x}, v{t}')
    I(f'{op} v{x}, v{x}, v{t}')

def att_tile(qt, S, O, P, tmp, slow):
    for kt in range(3):
        mfma(S[kt], KOP[kt], QOP[qt], bias(kt, qt))
    mfma(S[3], KOP[3], QOP[qt], bL[qt])
    regs = [S[kt] + r for kt in range(3) for r in range(4)] + [S[3]]
    if slow:
        m, t = tmp, tmp + 1
        I(f'v_max3_f32 v{m}, v{regs[0]}, v{regs[1]}, v{regs[2]}')
        for j in range(3, 13, 2):
            I(f'v_max3_f32 v{m}, v{m}, v{regs[j]}, v{regs[j+1]}')
        allreduce_g('v_max_f32', m, t)
        for r in regs:
            I(f'v_sub_f32 v{r}, v{r}, v{m}')
    for r in regs:
        I(f'v_exp_f32 v{r}, v{r}')
    cvtpk(P[0], f'v{S[0]}', f'v{S[0]+1}'); cvtpk(P[0] + 1, f'v{S[0]+2}', f'v{S[0]+3}')
    cvtpk(P[0] + 2, f'v{S[1]}', f'v{S[1]+1}'); cvtpk(P[0] + 3, f'v{S[1]+2}', f'v{S[1]+3}')
    cvtpk(P[1], f'v{S[2]}', f'v{S[2]+1}'); cvtpk(P[1] + 1, f'v{S[2]+2}', f'v{S[2]+3}')
    cvtpk(P[1] + 2, f'v{S[3]}', '0')
    for v in range(2):
        mfma(O + 4 * v, VOP[v][0], P[0], None)
        mfma(O + 4 * v, VOP[v][1], P[1], O + 4 * v)
    rl = tmp
    I(f'v_rcp_f32 v{rl}, v{O+6}')
    for j in (0, 1, 2, 3, 4, 5):
        I(f'v_mul_f32 v{O+j}, v{rl}, v{O+j}')
    cvtpk(tmp + 1, f'v{O}', f'v{O+1}'); cvtpk(tmp + 2, f'v{O+2}', f'v{O+3}'); cvtpk(tmp + 3, f'v{O+4}', f'v{O+5}')
    I(f'ds_write2st64_b32 v{vOW}, v{tmp+1}, v{tmp+2} offset0:{qt} offset1:{3+qt}')
    I(f'ds_write_b32 v{vOW}, v{tmp+3} offset:{(6+qt)*256}')

def att_L(S, O, P, QLb, t, vq, volr, slow):
    I(f'ds_read_b128 {q(QLb)}, v{vq} offset:{QLT}')
    for kt in range(4):
        mfma(S[kt], QLb, KOP[kt], bLq)
    I(f'v_bfi_b32 v{t}, v{mOdd}, v{S[1]}, v{S[0]}')
    I(f'v_bfi_b32 v{t+1}, v{mOdd}, v{S[3]}, v{S[2]}')
    I(f'v_bfi_b32 v{t}, v{mHi}, v{t+1}, v{t}')
    if slow:
        m = t + 1; t2 = t + 2
        I(f'v_mov_b32 v{m}, v{t}')
        for sh in (8, 4, 2, 1):
            I(f'v_max_f32_dpp v{m}, v{m}, v{m} row_ror:{sh} row_mask:0xf bank_mask:0xf')
        allreduce_g('v_max_f32', m, t2)
        I(f'v_sub_f32 v{t}, v{t}, v{m}')
    I(f'v_exp_f32 v{t}, v{t}')
    cvtpk(t, f'v{t}', '0')
    I(f'ds_write_b16 v{vPLw}, v{t}', d=['mem:PL'])
    I(f'ds_read2_b64 {q(P[0])}, v{vPLr} offset0:0 offset1:4', u=['mem:PL'])
    I(f'ds_read2_b64 {q(P[1])}, v{vPLr} offset0:8 offset1:12', u=['mem:PL'])
    for v in range(2):
        mfma(O + 4 * v, VOP[v][0], P[0], None)
        mfma(O + 4 * v, VOP[v][1], P[1], O + 4 * v)
    g_.bundle([f's_mov_b64 exec, s[{sEx}:{sEx+1}]',
               f'ds_write_b128 v{volr}, {q(O)}',
               f'ds_write_b128 v{volr}, {q(O+4)} offset:16',
               f's_mov_b64 exec, -1'])

def op_task(sBase, vStore):
    Y = Aa; Of = Ab; WS = [Ad, Ad + 4, Ae, Ae + 4]
    for m in range(0, 12, 2):
        I(f'ds_read2st64_b32 {q(Of+m,2)}, v{vOR} offset0:{3*m} offset1:{3*m+3}')
    k = 0
    for s in range(3):
        for u in range(6):
            w = WS[k % 4]; k += 1
            I(f'ds_read_b128 {q(w)}, v{vL16} offset:{WOB + (s*6+u)*1024}')
            mfma(Y + 4 * u, w, Of + 4 * s, None if s == 0 else Y + 4 * u)
    a0, a1, b0, b1 = Ad, Ad + 1, Ad + 2, Ad + 3
    I(f'v_add_f32 v{a0}, v{Y}, v{Y+1}'); I(f'v_add_f32 v{a1}, v{Y+2}, v{Y+3}')
    I(f'v_mul_f32 v{b0}, v{Y}, v{Y}'); I(f'v_mul_f32 v{b1}, v{Y+1}, v{Y+1}')
    for j in range(2, 24):
        if j >= 4: I(f'v_add_f32 v{a0 + (j & 1)}, v{a0 + (j & 1)}, v{Y+j}')
        I(f'v_fmac_f32 v{b0 + (j & 1)}, v{Y+j}, v{Y+j}')
    I(f'v_add_f32 v{a0}, v{a0}, v{a1}'); I(f'v_add_f32 v{b0}, v{b0}, v{b1}')
    I(f'v_permlane32_swap_b32 v{a0}, v{b0}')
    I(f'v_add_f32 v{a0}, v{a0}, v{b0}')
    I(f'v_mov_b32 v{b0}, v{a0}')
    I(f'v_permlane16_swap_b32 v{a0}, v{b0}')
    I(f'v_add_f32 v{a0}, v{a0}, v{b0}')
    I(f'v_mov_b32 v{b0}, v{a0}')
    I(f'v_permlane32_swap_b32 v{a0}, v{b0}')
    I(f'v_mul_f32 v{a0}, s{sInv96}, v{a0}')
    I(f'v_mov_b32 v{a1}, s{sEpsLN}')
    I(f'v_fmac_f32 v{a1}, s{sInv96}, v{b0}')
    I(f'v_fma_f32 v{a1}, -v{a0}, v{a0}, v{a1}')
    I(f'v_rsq_f32 v{a1}, v{a1}')
    I(f'v_mul_f32 v{a0}, v{a0}, v{a1}')
    for j in range(24):
        I(f'v_fma_f32 v{Y+j}, v{Y+j}, v{a1}, -v{a0}')
    for b in range(3):
        for jj in range(4):
            cvtpk(Of + 4 * b + jj, f'v{Y+8*b+2*jj}', f'v{Y+8*b+2*jj+1}')
        I(f'buffer_store_dwordx4 {q(Of+4*b)}, v{vStore}, s[{sO}:{sO+3}], s{sBase} offen offset:{64*b}', d=['mem:vm'], u=['mem:vm'])

def main_compute(slow):
    XF = Ac
    Dq = [Ab, Aa, Ab]; NT = [Aa + 12, Aa + 18, Aa + 12]; Dv = Ae
    def ldx(i, s): I(f'ds_read_b128 {q(XF+4*s)}, v{vXA} offset:{(3*i+s)*1024}')
    for s in range(3): ldx(0, s)
    for i in range(3):
        tstage_mfma(XF, Dq[i], Dv, (lambda s, i=i: ldx(i + 1, s)) if i < 2 else None)
        vcvt_stage(Dv, i)
        norm_stage(Dq[i], NT[i], PKSS[i & 1], KOP[i], QOP[i])
    SA = [Aa, Aa + 4, Aa + 8, Aa + 12]; SB = [Aa + 16, Aa + 20, Ad, Ad + 4]
    OA = Ab; OBr = Ae; QLb = Ab + 8
    I(f'v_add_u32 v{Ac+11}, s{sRho}, v{vG16}')
    I(f's_lshl_b32 s{sT4}, s{sW}, 7')
    I(f'v_add_u32 v{Ac+7}, s{sT4}, v{vOLR}')
    att_L(SB, OBr, POP[1], QLb, Ac + 8, Ac + 11, Ac + 7, slow)
    att_tile(0, SA, OA, POP[0], Ac, slow)
    att_tile(1, SB, OBr, POP[1], Ac + 8, slow)
    att_tile(2, SA, OA, POP[0], Ac, slow)

def srd(dst, lo, hi, size):
    I(f's_mov_b32 s{dst}, s{lo}'); I(f's_and_b32 s{dst+1}, s{hi}, 0xffff')
    I(f's_mov_b32 s{dst+2}, {size}'); I(f's_mov_b32 s{dst+3}, 0x20000')

def bf16r_unpack(d0, d1, a, b, t):
    cvtpk(t, f'v{a}', f'v{b}')
    I(f'v_lshlrev_b32 v{d0}, 16, v{t}')
    I(f'v_and_b32 v{d1}, 0xffff0000, v{t}')

def prologue(names, ntab):
    I(f's_cmp_ge_u32 s2, 512'); I('s_cbranch_scc1 L_END')
    g_.flush()
    I(f's_load_dwordx16 s[{sK}:{sK+15}], s[0:1], 0')
    I(f's_load_dwordx2 s[{sOutP}:{sOutP+1}], s[0:1], 72')
    i_ = I(f's_getpc_b64 s[{sTab}:{sTab+1}]'); i_.text += '\nL_PC:'
    I(f's_add_u32 s{sTab}, s{sTab}, L_TABLE-L_PC')
    I(f's_addc_u32 s{sTab+1}, s{sTab+1}, 0')
    I(f's_and_b32 s{sTab+1}, s{sTab+1}, 0xffff')
    I(f's_mov_b32 s{sTab+2}, {ntab*1024}'); I(f's_mov_b32 s{sTab+3}, 0x20000')
    I(f'v_lshrrev_b32 v1, 6, v0'); I(f'v_and_b32 v{vLane}, 63, v0')
    I(f'v_readfirstlane_b32 s{sH}, v1')
    I(f'v_lshlrev_b32 v{vL16}, 4, v{vLane}'); I(f'v_lshlrev_b32 v{vL4}, 2, v{vLane}')
    I(f's_mov_b32 s{sType}, 0'); I(f's_mov_b32 s{sT0}, s2'); I(f's_mov_b32 s{sT1}, 214')
    I(f's_cmp_lt_u32 s2, 497'); I('s_cbranch_scc1 L_TY')
    I(f's_mov_b32 s{sT1}, 2'); I(f's_mov_b32 s{sType}, 1'); I(f's_sub_u32 s{sT0}, s2, 497')
    I(f's_cmp_lt_u32 s2, 504'); I('s_cbranch_scc1 L_TY')
    I(f's_mov_b32 s{sType}, 2'); I(f's_sub_u32 s{sT0}, s2, 504')
    I(f's_cmp_lt_u32 s2, 511'); I('s_cbranch_scc1 L_TY')
    I(f's_mov_b32 s{sType}, 3'); I(f's_mov_b32 s{sT0}, 0')
    g_.label('L_TY')
    I(f's_mul_i32 s{sT2}, s{sT0}, 11')
    I(f's_mul_i32 s{sT3}, s{sT0}, 10'); I(f's_add_u32 s{sT3}, s{sT3}, s{sT1}')
    I(f's_cmp_lt_u32 s{sT0}, s{sT1}')
    I(f's_cselect_b32 s{sStart}, s{sT2}, s{sT3}')
    I(f's_cselect_b32 s{sN}, 11, 10')
    I(f's_cmp_eq_u32 s{sType}, 3'); I(f's_cselect_b32 s{sN}, 1, s{sN}')
    I(f's_mov_b32 s{sCx}, 1344'); I(f's_mov_b32 s{sC0}, 294912')
    I(f's_cmp_eq_u32 s{sType}, 1'); I(f's_cselect_b32 s{sC0}, 576, s{sC0}')
    I(f's_cmp_eq_u32 s{sType}, 2'); I(f's_cselect_b32 s{sC0}, 294336, s{sC0}'); I(f's_cselect_b32 s{sCx}, 686784, s{sCx}')
    I(f's_cmp_eq_u32 s{sType}, 3'); I(f's_cselect_b32 s{sC0}, 0, s{sC0}')
    I(f's_mov_b32 s{sInv96}, {f2u(1/96):#x}'); I(f's_mov_b32 s{sEpsLN}, {f2u(1e-5):#x}'); I(f's_mov_b32 s{sEps4}, {f2u(0.25e-12):#x}')
    I(f's_mov_b32 s{sEx}, 0x00010001'); I(f's_mov_b32 s{sEx+1}, 0x00010001')
    I(f's_lshl_b32 s{sT0}, s{sH}, 4'); I(f's_mov_b64 s[{sEq}:{sEq+1}], 0xffff'); I(f's_lshl_b64 s[{sEq}:{sEq+1}], s[{sEq}:{sEq+1}], s{sT0}')
    I(f's_add_u32 s{sT0}, s{sType}, {names["TOK"]}'); I(f's_lshl_b32 s{sT0}, s{sT0}, 10')
    tabload(0, quad_expr_sgpr=sT0)
    I(f's_lshl_b32 s{sT1}, s{sType}, 2'); I(f's_add_u32 s{sT1}, s{sT1}, s{sH}'); I(f's_add_u32 s{sT1}, s{sT1}, {names["DMA"]}'); I(f's_lshl_b32 s{sT1}, s{sT1}, 10')
    tabload(4, quad_expr_sgpr=sT1)
    I('s_waitcnt lgkmcnt(0)')
    srd(sX, sK, sK + 1, 50135232); srd(sO, sOutP, sOutP + 1, 50135232)
    for j in range(3):
        I(f'v_mov_b32 v{vDMA[j]}, v{4+j}'); I(f'v_mov_b32 v{vST[j]}, v{j}')
    I(f'v_mov_b32 v{vLoff}, v3')
    I(f's_mov_b32 s{sW}, 0'); window_base(sBd, sW); I(f's_mov_b32 s{sXD}, {XB}'); dma_issue(sBd, sXD)
    I(f's_mov_b32 s{sW}, 1'); window_base(sBd, sW); I(f's_mov_b32 s{sXD}, {XB+XSZ}'); dma_issue(sBd, sXD)
    SELS = {'S0': 0, 'S1': 4, 'SK1': 8, 'SK2': 12}
    for nm, b in SELS.items(): tabload(b, quad=names[nm])
    tabload(16, quad=names['C0']); tabload(20, quad=names['C1'])
    t0, t1, t2 = 24, 25, 26
    I(f'v_and_b32 v{t0}, 3, v{vLane}'); I(f'v_lshlrev_b32 v{t0}, 2, v{t0}')
    I(f'v_bfe_u32 v{t1}, v{vLane}, 2, 2'); I(f'v_add_u32 v{t0}, v{t0}, v{t1}')
    I(f'v_add_u32 v{t1}, s{sStart}, v{t0}')
    I(f's_mov_b32 s{sT0}, 59652324'); I(f'v_mul_hi_u32 v{t2}, v{t1}, s{sT0}')
    I(f'v_mul_u32_u24 v27, 72, v{t2}'); I(f'v_sub_u32 v{t1}, v{t1}, v27')
    I(f's_mov_b32 s{sT0}, 686784'); I(f'v_mul_lo_u32 v{t2}, v{t2}, s{sT0}'); I(f'v_mul_lo_u32 v{t1}, v{t1}, s{sCx}')
    I(f'v_add3_u32 v{vLoff}, v{vLoff}, v{t1}, v{t2}'); I(f'v_add_u32 v{vLoff}, s{sC0}, v{vLoff}')
    I(f'v_mov_b32 v{t1}, 0x7F000000'); I(f'v_cmp_gt_u32 vcc, s{sN}, v{t0}')
    I(f'v_cndmask_b32 v{vLoff}, v{t1}, v{vLoff}, vcc')
    XL = Ac if False else 28
    for s in range(3):
        I(f'buffer_load_dwordx4 {q(XL+4*s)}, v{vLoff}, s[{sX}:{sX+3}], 0 offen offset:{64*s}')
    I(f'v_mov_b32 v{ASEL}, v16'); I(f'v_mov_b32 v{ASEL+1}, v17')
    for j in range(4): I(f'v_mov_b32 v{ONESC+j}, v18')
    I(f'v_mov_b32 v{vMaskK}, v19')
    for i in range(3):
        I(f'v_mov_b32 v{QOP[i]+3}, v20'); I(f'v_mov_b32 v{KOP[i]+3}, 0')
    I(f'v_mov_b32 v{mOdd}, v21'); I(f'v_mov_b32 v{mHi}, v22')
    for s_ in range(2):
        I(f'v_mov_b32 v{PKSS[s_]+1}, 0'); I(f'v_mov_b32 v{POP[s_][1]+3}, 0')
    I(f'v_lshrrev_b32 v{vG16}, 4, v{vLane}'); I(f'v_lshlrev_b32 v{vG16}, 4, v{vG16}')
    I(f's_lshl_b32 s{sT0}, s{sH}, 7'); I(f's_add_u32 s{sT0}, s{sT0}, {PLB}')
    I(f'v_lshlrev_b32 v{vPLw}, 1, v{vLane}'); I(f'v_add_u32 v{vPLw}, s{sT0}, v{vPLw}')
    I(f'v_lshrrev_b32 v{vPLr}, 1, v{vG16}'); I(f'v_add_u32 v{vPLr}, s{sT0}, v{vPLr}')
    I(f's_mul_i32 s{sT0}, s{sH}, 1536'); I(f's_add_u32 s{sT0}, s{sT0}, {OLR}')
    I(f'v_lshlrev_b32 v{vOLR}, 1, v{vG16}'); I(f'v_add_u32 v{vOLR}, s{sT0}, v{vOLR}')
    I(f's_mul_i32 s{sT0}, s{sH}, 48'); I(f'v_add_u32 v23, s{sT0}, v23')
    srd(sT, sK + 2, sK + 3, 55296)
    LW = [40, 44, 48]; LW2 = [52, 56, 60]
    DT = {}
    DH = [[BIAS + 20 * hf + 4 * t for t in range(5)] for hf in range(2)]
    DH = [[BIAS + 4 * t for t in range(5)], [BIAS + 20, BIAS + 24, BIAS + 28, BIAS + 32, VOP[0][0]]]
    for s in range(3):
        for hf in range(2):
            L = LW if hf == 0 else LW2
            for b in range(3):
                I(f's_mov_b32 s{sT5}, {18432*s + 2304*hf + 192*b}')
                I(f'buffer_load_dwordx4 {q(L[b])}, v23, s[{sT}:{sT+3}], s{sT5} offen')
        for hf in range(2):
            L = LW if hf == 0 else LW2
            D = DH[hf]
            mfma(D[0], L[0], SELS['S0'], None)
            mfma(D[1], L[0], SELS['S1'], None); mfma(D[1], L[1], SELS['SK1'], D[1])
            mfma(D[2], L[1], SELS['SK2'], None)
            mfma(D[3], L[2], SELS['S0'], None)
            mfma(D[4], L[2], SELS['S1'], None)
        for t in range(5):
            dst = wqk(t, s) if t < 3 else wv(t - 3, s)
            for hf in range(2):
                cvtpk(dst + 2 * hf, f'v{DH[hf][t]}', f'v{DH[hf][t]+1}')
                cvtpk(dst + 2 * hf + 1, f'v{DH[hf][t]+2}', f'v{DH[hf][t]+3}')
    I(f's_cmp_eq_u32 s{sH}, 3'); I('s_cbranch_scc1 L_WOSKIP')
    g_.flush()
    tabload(0, quad=names['SO0']); tabload(4, quad=names['SO1'])
    I(f's_add_u32 s{sT0}, s{sH}, {names["WOROW"]}'); I(f's_lshl_b32 s{sT0}, s{sT0}, 10')
    tabload(8, quad_expr_sgpr=sT0)
    srd(sT, sK + 4, sK + 5, 18432)
    for hf in range(2):
        for b in range(3):
            I(f'buffer_load_dwordx4 {q(40+12*hf+4*b)}, v{8+hf}, s[{sT}:{sT+3}], 0 offen offset:{64*b}')
    I(f's_mul_i32 s{sT0}, s{sH}, 6144'); I(f's_add_u32 s{sT0}, s{sT0}, {WOB}')
    I(f'v_add_u32 v10, s{sT0}, v{vL16}')
    for u in range(6):
        for hf in range(2):
            mfma(BIAS + 8 * (u & 1) + 4 * hf, 40 + 12 * hf + 4 * (u >> 1), 4 * (u & 1), None)
        o = BIAS + 16 + 4 * (u & 1)
        for hf in range(2):
            d = BIAS + 8 * (u & 1) + 4 * hf
            cvtpk(o + 2 * hf, f'v{d}', f'v{d+1}'); cvtpk(o + 2 * hf + 1, f'v{d+2}', f'v{d+3}')
        I(f'ds_write_b128 v10, {q(o)} offset:{u*1024}')
    g_.label('L_WOSKIP')
    srd(sT, sK + 6, sK + 7, 8)
    I(f'v_and_b32 v0, 15, v{vLane}')
    I(f'v_lshlrev_b32 v1, 1, v0')
    I(f'buffer_load_ushort v2, v1, s[{sT}:{sT+3}], 0 offen')
    srd(sT, sK + 8, sK + 9, 64)
    I(f'v_lshrrev_b32 v3, 1, v{vG16}')
    I(f'buffer_load_dwordx2 v[4:5], v3, s[{sT}:{sT+3}], 0 offen')
    I(f'buffer_load_dwordx2 v[6:7], v3, s[{sT}:{sT+3}], 0 offen offset:32')
    srd(sT, sK + 10, sK + 11, 128)
    I(f'v_lshlrev_b32 v8, 1, v{vG16}'); I(f'v_add_u32 v8, v8, v1')
    for jj in range(4):
        I(f'buffer_load_ushort v{10+jj}, v8, s[{sT}:{sT+3}], 0 offen offset:{8*jj}')
    srd(sT, sK + 12, sK + 13, 676)
    I(f'v_lshlrev_b32 v9, 2, v0'); I(f's_lshl_b32 s{sT0}, s{sH}, 6'); I(f'v_add_u32 v9, s{sT0}, v9')
    for k in range(3):
        I(f'buffer_load_dword v{14+k}, v9, s[{sT}:{sT+3}], 0 offen offset:{256*k}')
    I(f'v_lshlrev_b32 v2, 16, v2')
    I(f'v_min_f32 v2, {f2u(4.59375):#x}, v2'); I(f'v_max_f32 v2, {f2u(-100.0):#x}, v2')
    I(f'v_mul_f32 v2, {f2u(LOG2E):#x}, v2'); I(f'v_exp_f32 v2, v2')
    cvtpk(2, 'v2', 'v2'); I(f'v_lshlrev_b32 v2, 16, v2')
    I(f'v_mul_f32 v2, {f2u(LOG2E):#x}, v2')
    I(f'v_readlane_b32 s{sTau}, v2, s{sH}')
    I(f'v_add_f32 v17, {f2u(16*LOG2E - 40.0):#x}, v2')
    I(f's_mov_b32 s{sSlow}, 0'); I(f's_cmp_gt_u32 s{sTau}, {f2u(59.0):#x}'); I(f's_cselect_b32 s{sSlow}, 1, 0')
    for r_, base in ((4, 18), (6, 22)):
        I(f'v_lshlrev_b32 v{base}, 16, v{r_}'); I(f'v_and_b32 v{base+1}, 0xffff0000, v{r_}')
        I(f'v_lshlrev_b32 v{base+2}, 16, v{r_+1}'); I(f'v_and_b32 v{base+3}, 0xffff0000, v{r_+1}')
    I(f'v_lshl_or_b32 v26, v11, 16, v10'); I(f'v_lshl_or_b32 v27, v13, 16, v12')
    I(f'v_lshlrev_b32 v40, 10, v0'); I(f'v_add_u32 v40, v40, v{vG16}'); I(f's_lshl_b32 s{sT0}, s{sH}, 6'); I(f'v_add_u32 v40, s{sT0}, v40')
    I(f'v_cmp_gt_u32 vcc, 4, v0'); I(f's_mov_b64 s[{sT0}:{sT0+1}], vcc')
    for k in range(3):
        c0, c1 = 41, 42
        I(f'v_lshlrev_b32 v{c0}, 16, v{14+k}'); I(f'v_and_b32 v{c1}, 0xffff0000, v{14+k}')
        for jj in range(4):
            I(f'v_mul_f32 v{44+jj}, v{c0}, v{18+jj}'); I(f'v_fmac_f32 v{44+jj}, v{c1}, v{22+jj}')
            I(f'v_max_f32 v{44+jj}, 0, v{44+jj}')
        cvtpk(48, 'v44', 'v45'); cvtpk(49, 'v46', 'v47')
        mfma16k(52, 48, 26)
        bf16r_unpack(52, 53, 52, 53, 50); bf16r_unpack(54, 55, 54, 55, 50)
        for r_ in range(4):
            z = 52 + r_
            I(f'v_mul_f32 v{z}, {f2u(-LOG2E):#x}, v{z}'); I(f'v_exp_f32 v{z}, v{z}')
            I(f'v_add_f32 v{z}, 1.0, v{z}'); I(f'v_rcp_f32 v{z}, v{z}')
        bf16r_unpack(52, 53, 52, 53, 50); bf16r_unpack(54, 55, 54, 55, 50)
        for r_ in range(4):
            z = 52 + r_
            I(f'v_mul_f32 v{z}, {f2u(16*LOG2E):#x}, v{z}'); I(f'v_sub_f32 v{z}, v{z}, v17')
        g_.bundle([f's_mov_b64 exec, s[{sT0}:{sT0+1}]',
                   f'ds_write_b128 v40, v[52:55] offset:{TB + 256*k}',
                   f's_mov_b64 exec, -1'])
    tstage_mfma(XL, Ab if False else 40, 52)
    vcvt_stage(52, 3)
    norm_stage(40, 10, PKSS[0], KOP[3], 4)
    I(f'v_mov_b32 v7, v{QOP[0]+3}')
    I(f'v_and_b32 v0, 15, v{vLane}'); I(f'v_lshlrev_b32 v0, 6, v0'); I(f'v_add_u32 v0, v0, v{vG16}')
    I(f's_lshl_b32 s{sT0}, s{sH}, 10'); I(f'v_add_u32 v0, s{sT0}, v0')
    I(f'ds_write_b128 v0, v[4:7] offset:{QLT}')
    I('s_waitcnt lgkmcnt(0)'); I('s_barrier')
    I(f's_lshl_b32 s{sT0}, s{sH}, 10'); I(f's_add_u32 s{sT0}, s{sT0}, {TB}')
    dsts = [bias(kt, qt) + r for kt in range(3) for qt in range(3) for r in range(4)] + bL + [bLq]
    for k in range(10):
        tabload(4 * k, quad=names['BIDX'] + k)
    for e in range(40):
        I(f'v_add_u32 v{e}, s{sT0}, v{e}')
        I(f'ds_read_b32 v{dsts[e]}, v{e}')
    I(f's_cmp_eq_u32 s{sType}, 0'); I('s_cbranch_scc1 L_NOMASK')
    g_.flush()
    I(f's_add_u32 s{sT0}, s{sType}, {names["BMASK"]-1}'); I(f's_lshl_b32 s{sT0}, s{sT0}, 10')
    tabload(40, quad_expr_sgpr=sT0)
    I(f's_mov_b32 s{sT1}, {f2u(-100.0*LOG2E):#x}')
    for e in range(40):
        I(f'v_bfe_i32 v44, v{40 + (e >> 5)}, {e & 31}, 1'); I(f'v_and_b32 v44, s{sT1}, v44')
        I(f'v_add_f32 v{dsts[e]}, v{dsts[e]}, v44')
    g_.label('L_NOMASK')
    I(f's_mov_b32 s{sW}, 0'); I(f's_mov_b32 s{sXR}, {XB}'); I(f's_mov_b32 s{sXD}, {XB+2*XSZ}')
    I(f's_mov_b32 s{sOWb}, {OB}'); I(f's_mov_b32 s{sORb}, {OB+OSZ}')
    I('s_waitcnt vmcnt(0) lgkmcnt(0)')

def select_task_regs():
    I(f's_lshl_b32 s{sT0}, s{sTask}, 8'); I(f's_add_u32 s{sT0}, s{sT0}, s{sORb}')
    I(f'v_add_u32 v{vOR}, s{sT0}, v{vL4}')
    I(f'v_mov_b32 v{vSTs}, v{vST[0]}')
    I(f's_cmp_eq_u32 s{sTask}, 0'); I(f's_cbranch_scc1 {select_task_regs.lab}')
    I(f'v_mov_b32 v{vSTs}, v{vST[1]}')
    I(f's_cmp_eq_u32 s{sTask}, 1'); I(f's_cbranch_scc1 {select_task_regs.lab}')
    I(f'v_mov_b32 v{vSTs}, v{vST[2]}')
    g_.label(select_task_regs.lab)

def loop(slow):
    sfx = '_S' if slow else '_F'
    g_.label('L_LOOP' + sfx)
    I('s_waitcnt vmcnt(3) lgkmcnt(0)'); I('s_barrier')
    I(f's_and_b32 s{sT0}, s{sW}, 3'); I(f's_cmp_lg_u32 s{sT0}, 0'); I(f's_cbranch_scc1 L_NOROT{sfx}')
    I(f's_cmp_eq_u32 s{sW}, 0'); I(f's_cbranch_scc1 L_NOROT{sfx}')
    for j in range(3):
        I(f'v_mov_b32_dpp v{KOP[3]+j}, v{KOP[3]+j} quad_perm:[1,2,3,0] row_mask:0xf bank_mask:0xf')
    for v in range(2):
        a, b = VOP[v][1] + 2, VOP[v][1] + 3
        I(f'v_alignbit_b32 v0, v{b}, v{a}, 16'); I(f'v_alignbit_b32 v{b}, v{a}, v{b}, 16'); I(f'v_mov_b32 v{a}, v0')
    g_.label('L_NOROT' + sfx)
    I(f'v_add_u32 v{vXA}, s{sXR}, v{vL16}')
    I(f's_mul_i32 s{sT0}, s{sH}, 2304'); I(f's_add_u32 s{sT0}, s{sT0}, s{sOWb}'); I(f'v_add_u32 v{vOW}, s{sT0}, v{vL4}')
    I(f's_and_b32 s{sT1}, s{sW}, 3'); I(f's_lshl_b32 s{sT1}, s{sT1}, 2')
    I(f'v_cmp_eq_u32 vcc, s{sT1}, v{vLane}')
    I(f's_lshr_b32 s{sT2}, s{sW}, 2'); I(f's_add_u32 s{sT2}, s{sT2}, s{sT1}'); I(f's_lshl_b32 s{sT2}, s{sT2}, 6')
    I(f's_lshl_b32 s{sRho}, s{sH}, 10'); I(f's_add_u32 s{sRho}, s{sRho}, s{sT2}')
    I(f'v_cndmask_b32 v{KOP[3]+3}, v{vMaskK}, v{KOP[0]+3}, vcc')
    I(f's_add_u32 s{sT4}, s{sW}, 2'); window_base(sBd, sT4)
    I(f's_add_u32 s{sTask}, s{sH}, s{sW}'); I(f's_and_b32 s{sTask}, s{sTask}, 3')
    I(f's_cmp_eq_u32 s{sTask}, 3'); I(f's_cbranch_scc1 L_NOTASK{sfx}')
    I(f's_cmp_eq_u32 s{sW}, 0'); I(f's_cbranch_scc1 L_NOTASK{sfx}')
    I(f's_sub_u32 s{sT4}, s{sW}, 1'); window_base(sBo, sT4)
    select_task_regs.lab = 'L_SEL' + sfx
    select_task_regs()
    op_task(sBo, vSTs)
    dma_issue(sBd, sXD)
    main_compute(slow)
    g_.flush(sched=True, name='task' + sfx)
    I(f's_branch L_NEXT{sfx}')
    g_.label('L_NOTASK' + sfx)
    dma_issue(sBd, sXD)
    main_compute(slow)
    g_.flush(sched=True, name='notask' + sfx)
    g_.label('L_NEXT' + sfx)
    I(f's_mov_b32 s{sT0}, s{sXD}')
    I(f's_add_u32 s{sXR}, s{sXR}, {XSZ}'); I(f's_cmp_eq_u32 s{sXR}, {XB+3*XSZ}'); I(f's_cselect_b32 s{sXR}, {XB}, s{sXR}')
    I(f's_add_u32 s{sXD}, s{sXD}, {XSZ}'); I(f's_cmp_eq_u32 s{sXD}, {XB+3*XSZ}'); I(f's_cselect_b32 s{sXD}, {XB}, s{sXD}')
    I(f's_mov_b32 s{sT0}, s{sOWb}'); I(f's_mov_b32 s{sOWb}, s{sORb}'); I(f's_mov_b32 s{sORb}, s{sT0}')
    I(f's_add_u32 s{sW}, s{sW}, 1'); I(f's_cmp_lt_u32 s{sW}, s{sN}'); I(f's_cbranch_scc1 L_LOOP{sfx}')
    g_.flush()

def epilogue():
    g_.label('L_EPI')
    I('s_waitcnt lgkmcnt(0)'); I('s_barrier')
    I(f'v_and_b32 v0, 3, v{vLane}'); I(f'v_lshlrev_b32 v0, 2, v0'); I(f'v_bfe_u32 v1, v{vLane}, 2, 2'); I(f'v_add_u32 v0, v0, v1')
    I(f'v_lshlrev_b32 v0, 7, v0'); I(f'v_add_u32 v0, v0, v{vOLR}')
    I(f'ds_read_b128 v[4:7], v0'); I(f'ds_read_b128 v[8:11], v0 offset:16')
    I(f'v_rcp_f32 v12, v10')
    for j in range(6): I(f'v_mul_f32 v{4+j}, v12, v{4+j}')
    cvtpk(13, 'v4', 'v5'); cvtpk(14, 'v6', 'v7'); cvtpk(15, 'v8', 'v9')
    I(f's_mul_i32 s{sT0}, s{sH}, 2304'); I(f's_add_u32 s{sT0}, s{sT0}, s{sOWb}'); I(f'v_add_u32 v{vOW}, s{sT0}, v{vL4}')
    I(f'ds_write2st64_b32 v{vOW}, v13, v14 offset0:0 offset1:3')
    I(f'ds_write_b32 v{vOW}, v15 offset:{6*256}')
    I('s_waitcnt lgkmcnt(0)'); I('s_barrier')
    I(f's_add_u32 s{sTask}, s{sH}, s{sW}'); I(f's_and_b32 s{sTask}, s{sTask}, 3')
    I(f's_cmp_eq_u32 s{sTask}, 3'); I('s_cbranch_scc1 L_EPIL')
    I(f's_sub_u32 s{sT4}, s{sW}, 1'); window_base(sBo, sT4)
    select_task_regs.lab = 'L_SEL_E'
    select_task_regs()
    I('s_branch L_EPIT')
    g_.label('L_EPIL')
    I(f'v_add_u32 v{vOR}, s{sOWb}, v{vL4}'); I(f'v_mov_b32 v{vSTs}, v{vLoff}'); I(f's_mov_b32 s{sBo}, 0')
    g_.label('L_EPIT')
    op_task(sBo, vSTs)
    g_.flush(sched=True, name='epi')
    g_.label('L_END')
    I('s_endpgm')
    g_.flush()

def main():
    tab, names = tables.build()
    prologue(names, tab.shape[0])
    I(f's_cmp_eq_u32 s{sSlow}, 0'); I('s_cbranch_scc0 L_LOOP_S')
    g_.flush()
    loop(False)
    I('s_branch L_EPI')
    loop(True)
    epilogue()
    insts = insert_nops(insert_waits(g_.out))
    hdr = open('cdna_kernels/' + NAME + '.s.ref').read().split('\n')
    com = [l for l in hdr if l.startswith(';') and '@launch' not in l]
    out = com + [f'; @launch grid=(512,1,1) block=(256,1,1) lds={LDS_TOTAL}']
    out += ['.amdgcn_target "amdgcn-amd-amdhsa--gfx950"', '.text', f'.globl {NAME}_kernel', '.p2align 8', f'.type {NAME}_kernel,@function', f'{NAME}_kernel:']
    for i in insts:
        out.append(i.text if i.kind == 'label' else '    ' + i.text)
    out += ['.p2align 8', '.type L_TABLE,@object', 'L_TABLE:']
    flat = tab.reshape(-1)
    for k in range(0, len(flat), 8):
        out.append('.long ' + ','.join(f'{int(x):#x}' for x in flat[k:k + 8]))
    out += [f'.size L_TABLE, {len(flat)*4}']
    out += ['.section .rodata,"a"', '.p2align 6', f'.amdhsa_kernel {NAME}_kernel',
            f'  .amdhsa_next_free_vgpr {NVGPR}', f'  .amdhsa_next_free_sgpr {NSGPR}', f'  .amdhsa_accum_offset {(NVGPR+3)//4*4}',
            '  .amdhsa_group_segment_fixed_size 0', '  .amdhsa_kernarg_size 96', '  .amdhsa_user_sgpr_count 2',
            '  .amdhsa_user_sgpr_kernarg_segment_ptr 1', '  .amdhsa_system_sgpr_workgroup_id_x 1', '.end_amdhsa_kernel']
    path = sys.argv[1] if len(sys.argv) > 1 else 'cdna_kernels/' + NAME + '.s'
    open(path, 'w').write('\n'.join(out) + '\n')
    print('NVGPR', NVGPR, 'insts', len(insts), file=sys.stderr)
if __name__ == '__main__':
    if '--nosched' in sys.argv:
        SCHED = False; sys.argv.remove('--nosched')
    main()
```
